```python
import torch

def _softmax(x, axis=-1):
    return torch.softmax(x, dim=axis)
def _gelu(x):
    return torch.nn.functional.gelu(x, approximate="tanh")
def _silu(x):
    return torch.nn.functional.silu(x)
def _sigmoid(x):
    return torch.sigmoid(x)
def _layernorm(x, axis=-1, eps=1e-5):
    m = x.mean(dim=axis, keepdim=True)
    v = x.var(dim=axis, keepdim=True, unbiased=False)
    return (x - m) / torch.sqrt(v + eps)
def _scatter_add(tgt, idx, src, axis=0):
    return tgt.clone().index_add_(axis, idx, src)
def _segment_sum(src, seg, n):
    out = torch.zeros((n,) + src.shape[1:], dtype=src.dtype)
    return out.index_add_(0, seg, src)
def _pad(x, pw):
    flat = tuple(v for pair in reversed(pw) for v in pair)
    return torch.nn.functional.pad(x, flat)

kernel_name = 'gather_scatter__cheap_equivariant_egnn__graph'

def setup_inputs():

    _w = (lambda a: (lambda t: t.to(torch.bfloat16) if t.is_floating_point() else t)(torch.as_tensor(a)))
    N, deg, D, De = 10000, 16, 128, max(4, 1)
    E = N * deg
    return {
        "h": _w((lambda *s: torch.randn(*s, dtype=torch.bfloat16) * 0.2)(N, D)),
        "pos": _w((lambda *s: torch.randn(*s, dtype=torch.bfloat16) * 0.8)(N, 3)),
        "e_attr": _w((lambda *s: torch.randn(*s, dtype=torch.bfloat16) * 0.8)(E, De)),
        "src": _w((lambda lo, hi, *s: torch.randint(lo, hi, s))(0, N, E).to(torch.int64)),
        "dst": _w((lambda lo, hi, *s: torch.randint(lo, hi, s))(0, N, E).to(torch.int64)),
        "w_e": _w(0.1 * (lambda *s: torch.randn(*s, dtype=torch.bfloat16) * 0.8)(2 * D + 1 + De, D)),
        "w_x": _w(0.1 * (lambda *s: torch.randn(*s, dtype=torch.bfloat16) * 0.2)(D, 1)),
        "w_h": _w(0.1 * (lambda *s: torch.randn(*s, dtype=torch.bfloat16) * 0.2)(2 * D, D)),
    }

def reference(h, pos, e_attr, src, dst, w_e, w_x, w_h):
    N, D = h.shape[0], h.shape[1]
    diff = pos[dst] - pos[src]
    dist2 = torch.sum(diff * diff, axis=-1, keepdims=True)
    e_in = torch.concatenate([h[dst], h[src], dist2, e_attr], axis=-1)
    m_ij = _silu(e_in @ w_e)
    coord_scale = m_ij @ w_x
    pos_new = pos + _segment_sum(diff * coord_scale, dst, N)
    m_i = _segment_sum(m_ij, dst, N)
    h_new = h + _silu(torch.concatenate([h, m_i], axis=-1) @ w_h)
    return h_new, pos_new
```

```python
import sys
L=[]
def A(s): L.append("    "+s)
def lab(s): L.append(s+":")
NCH=313; NB=250
WS_B=0; WS_W1=0x280000; WS_WH=0x288000; WS_OFF=0x2A0000; WS_LIST=0x300000
U=8
hdr=open('gather_scatter__cheap_equivariant_egnn__graph.s.ref').read().split('\n')
out=[l for l in hdr if l.startswith(';') and '@launch' not in l]
LDS2=48384+NCH*12*24
out.append("; @launch kernel=k1_kernel grid=(494,1,1) block=(256,1,1) lds=2048")
out.append(f"; @launch kernel=k2_kernel grid=(250,1,1) block=(1024,1,1) lds={LDS2}")
out+= ['.amdgcn_target "amdgcn-amd-amdhsa--gfx950"','.text']
def khead(n):
    L.extend([f".globl {n}",".p2align 8",f".type {n},@function",f"{n}:"])
def ptrs():
    A("s_load_dwordx16 s[16:31], s[0:1], 0")
    A("s_load_dwordx2 s[32:33], s[0:1], 80")
    A("s_load_dwordx2 s[34:35], s[0:1], 64")
    A("s_waitcnt lgkmcnt(0)")
def bfr(d,s):
    A(f"v_cvt_pk_bf16_f32 v{d}, v{s}, v{s}"); A(f"v_and_b32 v{d}, 0xffff0000, v{d}")
khead("k1_kernel"); ptrs()
A("s_cmp_ge_u32 s2, 313"); A("s_cbranch_scc1 K1_G")
A("s_lshl_b32 s3, s2, 9"); A("v_lshl_add_u32 v1, v0, 1, s3")
A("v_lshlrev_b32 v2, 2, v0"); A("v_mov_b32 v3, 0"); A("ds_write_b32 v2, v3")
A("s_waitcnt lgkmcnt(0)"); A("s_barrier")
A("s_mov_b32 s4, 160000"); A("v_cmp_gt_u32 vcc, s4, v1"); A("s_and_saveexec_b64 s[6:7], vcc")
A("s_cbranch_execz P_s1")
A("v_lshlrev_b32 v4, 2, v1"); A("v_lshlrev_b32 v5, 3, v1")
A("global_load_dwordx2 v[6:7], v4, s[24:25]"); A("global_load_dwordx2 v[8:9], v4, s[22:23]")
A("global_load_dwordx4 v[10:13], v5, s[20:21]"); A("s_waitcnt vmcnt(0)")
for e in range(2):
    A(f"v_mul_u32_u24 v14, 6, v{6+e}"); A(f"v_mul_u32_u24 v15, 6, v{8+e}")
    for i in range(3):
        A(f"global_load_ushort v{20+6*e+i}, v14, s[18:19] offset:{2*i}")
        A(f"global_load_ushort v{23+6*e+i}, v15, s[18:19] offset:{2*i}")
for e in range(2):
    A(f"v_mul_u32_u24 v{32+e}, 0xcccd, v{6+e}"); A(f"v_lshrrev_b32 v{32+e}, 21, v{32+e}")
    A(f"v_mul_u32_u24 v{34+e}, 40, v{32+e}"); A(f"v_sub_u32 v{34+e}, v{6+e}, v{34+e}")
    A(f"v_lshlrev_b32 v16, 2, v{32+e}"); A("v_mov_b32 v17, 1")
    A(f"ds_add_rtn_u32 v{36+e}, v16, v17")
A("s_waitcnt vmcnt(0)")
for e in range(2):
    b=40+8*e
    for i in range(3):
        A(f"v_lshlrev_b32 v{20+6*e+i}, 16, v{20+6*e+i}"); A(f"v_lshlrev_b32 v{23+6*e+i}, 16, v{23+6*e+i}")
        A(f"v_sub_f32 v{20+6*e+i}, v{20+6*e+i}, v{23+6*e+i}")
        bfr(20+6*e+i,20+6*e+i)
        A(f"v_mul_f32 v{23+6*e+i}, v{20+6*e+i}, v{20+6*e+i}"); bfr(23+6*e+i,23+6*e+i)
    A(f"v_add_f32 v{b+1}, v{23+6*e}, v{24+6*e}"); A(f"v_add_f32 v{b+1}, v{b+1}, v{25+6*e}"); bfr(b+1,b+1)
    A(f"v_lshl_or_b32 v{b}, v{34+e}, 16, v{8+e}")
    A(f"v_mov_b32 v{b+2}, v{10+2*e}"); A(f"v_mov_b32 v{b+3}, v{11+2*e}")
    A(f"v_lshrrev_b32 v{b+4}, 16, v{20+6*e}"); A(f"v_or_b32 v{b+4}, v{b+4}, v{21+6*e}")
    A(f"v_lshrrev_b32 v{b+5}, 16, v{22+6*e}")
lab("P_s1")
A("s_mov_b64 exec, s[6:7]")
A("s_waitcnt lgkmcnt(0)"); A("s_barrier")
A("ds_read_b32 v60, v2"); A("s_waitcnt lgkmcnt(0)"); A("v_mov_b32 v61, v60")
for sh in (1,2,4,8):
    A("s_nop 1"); A(f"v_add_u32_dpp v61, v61, v61 row_shr:{sh} row_mask:0xf bank_mask:0xf bound_ctrl:0")
A("s_nop 1"); A("v_add_u32_dpp v61, v61, v61 row_bcast:15 row_mask:0xa bank_mask:0xf")
A("s_nop 1"); A("v_add_u32_dpp v61, v61, v61 row_bcast:31 row_mask:0xc bank_mask:0xf")
A("s_nop 1"); A("v_readlane_b32 s8, v61, 63")
A("v_lshrrev_b32 v62, 6, v0"); A("v_lshlrev_b32 v63, 2, v62"); A("v_mov_b32 v64, s8")
A("ds_write_b32 v63, v64 offset:1024"); A("s_waitcnt lgkmcnt(0)"); A("s_barrier")
A("ds_read_b128 v[64:67], v3 offset:1024"); A("s_waitcnt lgkmcnt(0)")
A("v_sub_u32 v61, v61, v60")
for k in range(3):
    A(f"v_cmp_lt_u32 vcc, {k}, v62"); A("s_nop 1"); A(f"v_cndmask_b32 v68, 0, v{64+k}, vcc"); A("v_add_u32 v61, v61, v68")
A("s_barrier")
A("ds_write_b32 v2, v61")
A("s_lshl_b32 s3, s2, 10"); A("v_add_u32 v69, s3, v2"); A(f"v_add_u32 v69, {WS_OFF}, v69")
A("global_store_dword v69, v61, s[32:33]")
A("s_waitcnt lgkmcnt(0)"); A("s_barrier")
A("s_mov_b32 s4, 160000"); A("v_cmp_gt_u32 vcc, s4, v1"); A("s_and_saveexec_b64 s[6:7], vcc")
A("s_cbranch_execz K1_end")
for e in range(2):
    A(f"v_lshlrev_b32 v16, 2, v{32+e}"); A(f"ds_read_b32 v{70+e}, v16")
A("s_waitcnt lgkmcnt(0)"); A("s_lshl_b32 s3, s2, 9")
for e in range(2):
    b=40+8*e
    A(f"v_add3_u32 v{70+e}, v{70+e}, v{36+e}, s3"); A(f"v_lshlrev_b32 v{70+e}, 5, v{70+e}"); A(f"v_add_u32 v{70+e}, {WS_LIST}, v{70+e}")
    A(f"global_store_dwordx4 v{70+e}, v[{b}:{b+3}], s[32:33]"); A(f"global_store_dwordx2 v{70+e}, v[{b+4}:{b+5}], s[32:33] offset:16")
A("s_branch K1_end")
lab("K1_G")
A("s_cmp_ge_u32 s2, 470"); A("s_cbranch_scc1 K1_T")
A("s_sub_u32 s3, s2, 313"); A("s_lshl_b32 s3, s3, 6")
A("v_and_b32 v1, 31, v0"); A("v_bfe_u32 v2, v0, 5, 1"); A("v_lshrrev_b32 v3, 6, v0")
A("v_lshl_add_u32 v4, v3, 5, v1")
A("v_lshlrev_b32 v5, 3, v2")
A("v_add_u32 v6, 128, v5"); A("v_lshlrev_b32 v6, 8, v6"); A("v_lshl_add_u32 v6, v4, 1, v6")
for s in range(8):
    for i in range(8):
        r=16+4*s+i//2
        A(f"global_load_ushort v{48+8*s+i}, v6, s[26:27] offset:{i*256}")
    A("v_add_u32 v6, 4096, v6")
A("s_waitcnt vmcnt(0)")
for q in range(32): A(f"v_lshl_or_b32 v{16+q}, v{49+2*q}, 16, v{48+2*q}")
for t in range(2):
    A(f"v_add_u32 v{8+t}, s3, v1");
    if t: A(f"v_add_u32 v{8+t}, 32, v{8+t}")
    A(f"v_min_u32 v10, 9999, v{8+t}"); A("v_lshlrev_b32 v10, 8, v10"); A("v_lshl_add_u32 v10, v5, 1, v10")
    for s in range(8):
        A(f"global_load_dwordx4 v[{48+32*t+4*s}:{51+32*t+4*s}], v10, s[16:17] offset:{32*s}")
A("s_waitcnt vmcnt(0)")
for t in range(2):
    for s in range(8):
        c = "0" if s==0 else f"v[{112+16*t}:{127+16*t}]"
        A(f"v_mfma_f32_32x32x16_bf16 v[{112+16*t}:{127+16*t}], v[{16+4*s}:{19+4*s}], v[{48+32*t+4*s}:{51+32*t+4*s}], {c}")
A("s_nop 15")
A("v_lshl_add_u32 v11, v3, 5, 0"); A("v_lshl_add_u32 v11, v2, 2, v11"); A("v_lshlrev_b32 v11, 1, v11")
for t in range(2):
    A(f"v_lshl_add_u32 v12, v{8+t}, 8, v11")
    A("s_movk_i32 s4, 10000"); A(f"v_cmp_gt_u32 vcc, s4, v{8+t}"); A("s_and_saveexec_b64 s[6:7], vcc")
    for j in range(4):
        d=112+16*t+4*j
        A(f"v_cvt_pk_bf16_f32 v{d}, v{d}, v{d+1}"); A(f"v_cvt_pk_bf16_f32 v{d+1}, v{d+2}, v{d+3}")
        A(f"global_store_dwordx2 v12, v[{d}:{d+1}], s[32:33] offset:{16*j}")
    A("s_mov_b64 exec, s[6:7]")
A("s_branch K1_end")
lab("K1_T")
A("s_cmp_ge_u32 s2, 494"); A("s_cbranch_scc1 K1_end")
A("s_sub_u32 s3, s2, 470"); A("s_lshl_b32 s3, s3, 8"); A("v_add_u32 v1, s3, v0")
A("s_mov_b64 s[8:9], s[26:27]"); A("s_movk_i32 s10, 8"); A(f"s_mov_b32 s11, {WS_W1}")
A("s_cmp_lt_u32 s2, 478"); A("s_cbranch_scc1 T_go")
A("v_subrev_u32 v1, 2048, v1"); A("s_mov_b64 s[8:9], s[30:31]"); A("s_movk_i32 s10, 9"); A(f"s_mov_b32 s11, {WS_WH}")
lab("T_go")
A("v_and_b32 v2, 127, v1"); A("v_lshrrev_b32 v3, 7, v1")
A("v_lshlrev_b32 v4, 11, v3"); A("v_lshl_add_u32 v4, v2, 1, v4")
for i in range(8):
    A(f"global_load_ushort v{16+i}, v4, s[8:9] offset:{i*256}")
A("v_lshlrev_b32 v5, s10, v2"); A("v_lshl_add_u32 v5, v3, 4, v5"); A("v_add_u32 v5, s11, v5")
A("s_waitcnt vmcnt(0)")
for q in range(4): A(f"v_lshl_or_b32 v{8+q}, v{17+2*q}, 16, v{16+2*q}")
A("global_store_dwordx4 v5, v[8:11], s[32:33]")
lab("K1_end"); A("s_endpgm")
AT=0; MO=24576; PO=47616; CN=48256; LI=48384
khead("k2_kernel")
A("s_cmp_ge_u32 s2, 250"); A("s_cbranch_scc1 K2_end")
ptrs()
A("s_mul_i32 s36, s2, 40")
A("v_lshrrev_b32 v1, 6, v0"); A("s_nop 0"); A("v_readfirstlane_b32 s37, v1")
A("v_and_b32 v2, 63, v0"); A("v_and_b32 v3, 15, v0"); A("v_bfe_u32 v4, v0, 4, 2")
A("v_mov_b32 v5, 0"); A("v_lshlrev_b32 v6, 2, v0")
for k in range(6):
    if k==5:
        A("v_cmp_gt_u32 vcc, 832, v0"); A("s_and_saveexec_b64 s[6:7], vcc")
    A(f"ds_write_b32 v6, v5 offset:{MO+4096*k}")
A("s_mov_b64 exec, s[6:7]")
A("v_lshlrev_b32 v7, 4, v3")
A("v_lshlrev_b32 v8, 10, v0"); A("s_lshl_b32 s3, s2, 2"); A(f"s_add_u32 s3, s3, {WS_OFF}"); A("v_add_u32 v8, s3, v8")
A(f"v_cmp_gt_u32 vcc, {NCH}, v0"); A("s_and_saveexec_b64 s[40:41], vcc"); A("s_mov_b64 s[42:43], exec")
A("global_load_dwordx2 v[10:11], v8, s[32:33]")
A("s_mov_b64 exec, s[40:41]")
A("s_cmp_lt_u32 s37, 8"); A("s_cbranch_scc1 G1_skip")
A("s_sub_u32 s3, s37, 8"); A("s_lshl_b32 s3, s3, 4")
A("v_add_u32 v12, s3, v3"); A("v_lshlrev_b32 v12, 8, v12"); A("v_lshl_add_u32 v12, v4, 4, v12"); A(f"v_add_u32 v12, {WS_W1}, v12")
for s in range(4): A(f"global_load_dwordx4 v[{16+4*s}:{19+4*s}], v12, s[32:33] offset:{64*s}")
for t in range(3):
    A(f"v_add3_u32 v13, s36, v3, {16*t}"); A("v_min_u32 v13, 9999, v13"); A("v_lshlrev_b32 v13, 8, v13"); A("v_lshl_add_u32 v13, v4, 4, v13")
    for s in range(4): A(f"global_load_dwordx4 v[{32+4*s}:{35+4*s}], v13, s[16:17] offset:{64*s}")
    A("s_waitcnt vmcnt(0)")
    for s in range(4):
        A(f"v_mfma_f32_16x16x32_bf16 v[48:51], v[{16+4*s}:{19+4*s}], v[{32+4*s}:{35+4*s}], {'0' if s==0 else 'v[48:51]'}")
    A(f"v_add_u32 v14, {16*t}, v3"); A("v_lshlrev_b32 v14, 9, v14"); A("v_lshl_add_u32 v14, v4, 4, v14"); A("s_lshl_b32 s4, s3, 2"); A("v_add_u32 v14, s4, v14")
    A("s_nop 7"); A("ds_write_b128 v14, v[48:51]")
lab("G1_skip")
A("s_waitcnt vmcnt(0)")
A("v_lshlrev_b32 v6, 9, v0"); A("v_mov_b32 v1, v10"); A("v_mov_b32 v5, v11")
lab("PASS")
A("s_waitcnt lgkmcnt(0)"); A("s_barrier")
A("v_add_u32 v9, 65536, v7")
for j in range(5): A(f"global_load_dwordx4 v[{104+4*j}:{107+4*j}], v9, s[26:27] offset:{j*256}")
A("global_load_dwordx4 v[124:127], v7, s[28:29]")
A("s_cmp_ge_u32 s37, 5"); A("s_cbranch_scc1 F_skip")
A("s_mov_b64 exec, s[42:43]")
A("v_sub_u32 v13, v5, v1"); A("v_min_u32 v13, 12, v13")
A(f"v_mov_b32 v14, {CN}"); A("ds_add_rtn_u32 v15, v14, v13")
A("v_add_u32 v16, v6, v1"); A("v_lshlrev_b32 v16, 5, v16"); A(f"v_add_u32 v16, {WS_LIST}, v16")
for j in range(12):
    A(f"v_cmp_lt_u32 vcc, {j}, v13"); A("s_and_b64 exec, s[42:43], vcc")
    A(f"global_load_dwordx4 v[{32+6*j}:{35+6*j}], v16, s[32:33] offset:{32*j}") if False else None
    A(f"global_load_dwordx2 v[{32+6*j}:{33+6*j}], v16, s[32:33] offset:{32*j}")
    A(f"global_load_dwordx2 v[{34+6*j}:{35+6*j}], v16, s[32:33] offset:{32*j+8}")
    A(f"global_load_dwordx2 v[{36+6*j}:{37+6*j}], v16, s[32:33] offset:{32*j+16}")
A("s_mov_b64 exec, s[42:43]")
A("v_add_u32 v1, v1, v13")
A("v_cmp_lt_u32 vcc, v1, v5"); A("s_and_b64 exec, s[42:43], vcc"); A("v_mov_b32 v17, 1"); A(f"ds_write_b32 v14, v17 offset:4")
A("s_mov_b64 exec, s[42:43]")
A("s_waitcnt lgkmcnt(0)"); A("v_mul_u32_u24 v15, 24, v15"); A("s_waitcnt vmcnt(0)")
for j in range(12):
    A(f"v_cmp_lt_u32 vcc, {j}, v13"); A("s_and_b64 exec, s[42:43], vcc")
    for q in range(3): A(f"ds_write_b64 v15, v[{32+6*j+2*q}:{33+6*j+2*q}] offset:{LI+24*j+8*q}")
A("s_mov_b64 exec, -1")
lab("F_skip")
A("s_waitcnt vmcnt(0)")
for j in range(5):
    for q in range(4):
        A(f"v_lshlrev_b32 v{64+8*j+2*q}, 16, v{104+4*j+q}"); A(f"v_and_b32 v{65+8*j+2*q}, 0xffff0000, v{104+4*j+q}")
for q in range(4):
    A(f"v_lshlrev_b32 v{104+2*q}, 16, v{124+q}"); A(f"v_and_b32 v{105+2*q}, 0xffff0000, v{124+q}")
A("s_waitcnt lgkmcnt(0)"); A("s_barrier")
A(f"v_mov_b32 v14, {CN}"); A("ds_read_b64 v[16:17], v14"); A("s_waitcnt lgkmcnt(0)")
A("v_readfirstlane_b32 s38, v16"); A("v_readfirstlane_b32 s39, v17")
A("s_mov_b32 s44, 0xbfb8aa3b"); A("s_mov_b32 s45, 0xbfb8aa3b")
A("s_cmp_eq_u32 s38, 0"); A("s_cbranch_scc1 E_done")
A("s_sub_u32 s46, s38, 1"); A("s_lshl_b32 s47, s37, 2")
lab("ELOOP")
for u in range(U):
    A(f"v_add_u32 v{16+u}, s47, v4"); A(f"v_add_u32 v{16+u}, {64*u}, v{16+u}")
    A(f"v_min_u32 v24, s46, v{16+u}"); A("v_mul_u32_u24 v24, 24, v24"); A(f"ds_read_b32 v{112+u}, v24 offset:{LI}")
A("s_waitcnt lgkmcnt(0)")
for u in range(U):
    A(f"v_and_b32 v24, 0xffff, v{112+u}"); A("v_lshlrev_b32 v24, 8, v24"); A("v_add_u32 v24, v24, v7")
    A(f"global_load_dwordx4 v[{32+4*u}:{35+4*u}], v24, s[32:33]")
for u in range(U):
    Bq=32+4*u
    A(f"v_min_u32 v24, s46, v{16+u}"); A("v_mul_u32_u24 v24, 24, v24")
    A(f"ds_read_b64 v[26:27], v24 offset:{LI}"); A(f"ds_read_b64 v[28:29], v24 offset:{LI+8}"); A(f"ds_read_b64 v[30:31], v24 offset:{LI+16}")
    A("s_waitcnt lgkmcnt(0)"); A("v_lshrrev_b32 v26, 16, v26")
    A("v_lshl_add_u32 v24, v26, 9, v7"); A("v_add_u32 v24, v24, v7") if False else None
    A("v_lshlrev_b32 v25, 1, v7"); A("v_lshl_add_u32 v24, v26, 9, v25")
    A("ds_read_b128 v[8:11], v24"); A("ds_read_b128 v[12:15], v24 offset:16")
    A(f"s_waitcnt vmcnt({U-1-u})")
    for q in range(4):
        A(f"v_lshlrev_b32 v{112+2*q}, 16, v{Bq+q}"); A(f"v_and_b32 v{113+2*q}, 0xffff0000, v{Bq+q}")
    A("v_lshlrev_b32 v120, 16, v28"); A("v_and_b32 v121, 0xffff0000, v28"); A("v_lshlrev_b32 v122, 16, v29"); A("v_and_b32 v123, 0xffff0000, v29")
    A("s_waitcnt lgkmcnt(0)")
    for q in range(4): A(f"v_pk_add_f32 v[{112+2*q}:{113+2*q}], v[{112+2*q}:{113+2*q}], v[{8+2*q}:{9+2*q}]")
    xs=[27,120,121,122,123]
    for j in range(5):
        x=xs[j]
        for q in range(4):
            if x%2==0: src=f"v[{x}:{x+1}]"; os_="op_sel_hi:[0,1,1]"
            else: src=f"v[{x-1}:{x}]"; os_="op_sel:[1,0,0] op_sel_hi:[1,1,1]"
            A(f"v_pk_fma_f32 v[{112+2*q}:{113+2*q}], {src}, v[{64+8*j+2*q}:{65+8*j+2*q}], v[{112+2*q}:{113+2*q}] {os_}")
    for q in range(4): A(f"v_pk_mul_f32 v[{8+2*q}:{9+2*q}], v[{112+2*q}:{113+2*q}], s[44:45]")
    for q in range(8): A(f"v_exp_f32 v{8+q}, v{8+q}")
    A("s_nop 0")
    for q in range(8): A(f"v_add_f32 v{8+q}, 1.0, v{8+q}")
    for q in range(8): A(f"v_rcp_f32 v{8+q}, v{8+q}")
    A("s_nop 0")
    for q in range(4): A(f"v_pk_mul_f32 v[{112+2*q}:{113+2*q}], v[{112+2*q}:{113+2*q}], v[{8+2*q}:{9+2*q}]")
    A("v_pk_mul_f32 v[8:9], v[112:113], v[104:105]")
    for q in range(1,4): A(f"v_pk_fma_f32 v[8:9], v[{112+2*q}:{113+2*q}], v[{104+2*q}:{105+2*q}], v[8:9]")
    A("v_add_f32 v8, v8, v9")
    for r in (8,4,2,1):
        A("s_nop 1"); A(f"v_add_f32_dpp v8, v8, v8 row_ror:{r} row_mask:0xf bank_mask:0xf")
    bfr(8,8)
    A("v_lshlrev_b32 v9, 16, v30"); A("v_and_b32 v10, 0xffff0000, v30"); A("v_lshlrev_b32 v11, 16, v31")
    A("v_cmp_eq_u32 vcc, 1, v3"); A("s_nop 1"); A("v_cndmask_b32 v9, v9, v10, vcc")
    A("v_cmp_eq_u32 vcc, 2, v3"); A("s_nop 1"); A("v_cndmask_b32 v9, v9, v11, vcc")
    A("v_mul_f32 v9, v9, v8"); bfr(9,9)
    A("v_lshlrev_b32 v10, 2, v3"); A("v_lshl_add_u32 v11, v26, 4, v10"); A("v_mul_u32_u24 v12, 576, v26"); A("v_add_u32 v12, v12, v10")
    A(f"v_cmp_gt_u32 vcc, s38, v{16+u}"); A("s_and_b64 exec, exec, vcc")
    for r in range(8): A(f"ds_add_f32 v12, v{112+r} offset:{MO+64*r}")
    A("v_cmp_gt_u32 vcc, 3, v3"); A("s_and_b64 exec, exec, vcc")
    A(f"ds_add_f32 v11, v9 offset:{PO}")
    A("s_mov_b64 exec, -1")
A(f"s_add_u32 s47, s47, {64*U}"); A("s_cmp_lt_u32 s47, s38"); A("s_cbranch_scc1 ELOOP")
lab("E_done")
A("s_waitcnt lgkmcnt(0)"); A("s_barrier")
A("s_cmp_eq_u32 s39, 0"); A("s_cbranch_scc1 NODE")
A("v_mov_b32 v16, 0"); A("v_mov_b32 v17, 0"); A(f"v_mov_b32 v14, {CN}"); A("ds_write_b64 v14, v[16:17]"); A("s_branch PASS")
lab("NODE")
A("s_cmp_ge_u32 s37, 8"); A("s_cbranch_scc1 POSO")
A("s_lshl_b32 s3, s37, 4")
A("v_add_u32 v12, s3, v3"); A("v_lshlrev_b32 v12, 9, v12"); A("v_lshl_add_u32 v12, v4, 4, v12"); A(f"v_add_u32 v12, {WS_WH}, v12")
for s in range(8): A(f"global_load_dwordx4 v[{64+4*s}:{67+4*s}], v12, s[32:33] offset:{64*s}")
for t in range(3):
    A(f"v_add3_u32 v13, s36, v3, {16*t}"); A("v_min_u32 v15, 9999, v13"); A("v_lshlrev_b32 v15, 8, v15"); A("v_lshl_add_u32 v14, v4, 4, v15")
    for s in range(4): A(f"global_load_dwordx4 v[{16+4*s}:{19+4*s}], v14, s[16:17] offset:{64*s}")
    A("s_lshl_b32 s4, s3, 1"); A("v_lshl_add_u32 v15, v4, 3, v15"); A("v_add_u32 v15, s4, v15")
    A("global_load_dwordx2 v[56:57], v15, s[16:17]")
    A(f"v_add_u32 v14, {16*t}, v3"); A("v_min_u32 v14, 39, v14"); A("v_mul_u32_u24 v14, 576, v14"); A("v_lshl_add_u32 v14, v4, 2, v14")
    for s in range(4):
        for r in range(8): A(f"ds_read_b32 v{96+r}, v14 offset:{MO+64*r+16*s}")
        A("s_waitcnt lgkmcnt(0)")
        for q in range(4): A(f"v_cvt_pk_bf16_f32 v{32+4*s+q}, v{96+2*q}, v{97+2*q}")
    A("s_waitcnt vmcnt(0)"); A("s_nop 1")
    for s in range(8):
        A(f"v_mfma_f32_16x16x32_bf16 v[48:51], v[{64+4*s}:{67+4*s}], v[{16+4*s}:{19+4*s}], {'0' if s==0 else 'v[48:51]'}")
    A("s_nop 7")
    for r in range(4):
        bfr(48+r,48+r)
        A(f"v_mul_f32 v{52+r}, s44, v{48+r}"); A(f"v_exp_f32 v{52+r}, v{52+r}"); A("s_nop 0"); A(f"v_add_f32 v{52+r}, 1.0, v{52+r}")
        A(f"v_rcp_f32 v{52+r}, v{52+r}"); A("s_nop 0"); A(f"v_mul_f32 v{48+r}, v{48+r}, v{52+r}"); bfr(48+r,48+r)
    A("v_lshlrev_b32 v52, 16, v56"); A("v_and_b32 v53, 0xffff0000, v56"); A("v_lshlrev_b32 v54, 16, v57"); A("v_and_b32 v55, 0xffff0000, v57")
    for r in range(4): A(f"v_add_f32 v{48+r}, v{48+r}, v{52+r}")
    A("v_cvt_pk_bf16_f32 v48, v48, v49"); A("v_cvt_pk_bf16_f32 v49, v50, v51")
    A(f"v_add_u32 v14, {16*t}, v3"); A("v_cmp_gt_u32 vcc, 40, v14"); A("s_and_saveexec_b64 s[6:7], vcc")
    A("global_store_dwordx2 v15, v[48:49], s[34:35]")
    A("s_mov_b64 exec, s[6:7]")
A("s_branch K2_end")
lab("POSO")
A("s_cmp_ge_u32 s37, 10"); A("s_cbranch_scc1 K2_end")
A("v_subrev_u32 v12, 512, v0")
A("v_cmp_gt_u32 vcc, 120, v12"); A("s_and_saveexec_b64 s[6:7], vcc"); A("s_cbranch_execz K2_end")
A("v_mul_u32_u24 v13, 0x5556, v12"); A("v_lshrrev_b32 v13, 16, v13"); A("v_add_u32 v14, v12, v13"); A("v_lshlrev_b32 v14, 2, v14")
A(f"ds_read_b32 v15, v14 offset:{PO}")
A("s_mul_i32 s3, s36, 3"); A("v_add_u32 v12, s3, v12"); A("v_lshlrev_b32 v12, 1, v12")
A("global_load_ushort v16, v12, s[18:19]"); A("s_waitcnt vmcnt(0) lgkmcnt(0)")
bfr(15,15); A("v_lshlrev_b32 v16, 16, v16"); A("v_add_f32 v16, v16, v15"); A("v_cvt_pk_bf16_f32 v16, v16, v16")
A("v_add_u32 v12, 2560000, v12"); A("global_store_short v12, v16, s[34:35]")
lab("K2_end"); A("s_endpgm")
out+=L
out+=['.section .rodata,"a"']
for n,v in (("k1_kernel",144),("k2_kernel",128)):
    out+=['.p2align 6',f'.amdhsa_kernel {n}',f'  .amdhsa_next_free_vgpr {v}','  .amdhsa_next_free_sgpr 64',f'  .amdhsa_accum_offset {v}',
    '  .amdhsa_group_segment_fixed_size 0','  .amdhsa_kernarg_size 88','  .amdhsa_user_sgpr_count 2','  .amdhsa_user_sgpr_kernarg_segment_ptr 1',
    '  .amdhsa_system_sgpr_workgroup_id_x 1','  .amdhsa_float_denorm_mode_32 3','.end_amdhsa_kernel']
open('gather_scatter__cheap_equivariant_egnn__graph.s','w').write('\n'.join(out)+'\n')
```

```python
import sys
L=[]
def A(s): L.append("    "+s)
def lab(s): L.append(s+":")
NCH=313; NB=250
WS_B=0; WS_W1=0x280000; WS_WH=0x288000; WS_OFF=0x2A0000; WS_LIST=0x300000
U=2
RR=10
hdr=open('gather_scatter__cheap_equivariant_egnn__graph.s.ref').read().split('\n')
out=[l for l in hdr if l.startswith(';') and '@launch' not in l]
LDS2=46400+NCH*12*24
out.append("; @launch kernel=k1_kernel grid=(494,1,1) block=(256,1,1) lds=2048")
out.append(f"; @launch kernel=k2_kernel grid=(250,1,1) block=(1024,1,1) lds={LDS2}")
out+= ['.amdgcn_target "amdgcn-amd-amdhsa--gfx950"','.text']
def khead(n):
    L.extend([f".globl {n}",".p2align 8",f".type {n},@function",f"{n}:"])
def ptrs():
    A("s_load_dwordx16 s[16:31], s[0:1], 0")
    A("s_load_dwordx2 s[32:33], s[0:1], 80")
    A("s_load_dwordx2 s[34:35], s[0:1], 64")
    A("s_waitcnt lgkmcnt(0)")
def bfr(d,s):
    A(f"v_cvt_pk_bf16_f32 v{d}, v{s}, v{s}"); A(f"v_and_b32 v{d}, 0xffff0000, v{d}")
khead("k1_kernel"); ptrs()
A("s_cmp_ge_u32 s2, 313"); A("s_cbranch_scc1 K1_G")
A("s_lshl_b32 s3, s2, 9"); A("v_lshl_add_u32 v1, v0, 1, s3")
A("v_lshlrev_b32 v2, 2, v0"); A("v_mov_b32 v3, 0"); A("ds_write_b32 v2, v3")
A("s_waitcnt lgkmcnt(0)"); A("s_barrier")
A("s_mov_b32 s4, 160000"); A("v_cmp_gt_u32 vcc, s4, v1"); A("s_and_saveexec_b64 s[6:7], vcc")
A("s_cbranch_execz P_s1")
A("v_lshlrev_b32 v4, 2, v1"); A("v_lshlrev_b32 v5, 3, v1")
A("global_load_dwordx2 v[6:7], v4, s[24:25]"); A("global_load_dwordx2 v[8:9], v4, s[22:23]")
A("global_load_dwordx4 v[10:13], v5, s[20:21]"); A("s_waitcnt vmcnt(0)")
for e in range(2):
    A(f"v_mul_u32_u24 v14, 6, v{6+e}"); A(f"v_mul_u32_u24 v15, 6, v{8+e}")
    for i in range(3):
        A(f"global_load_ushort v{20+6*e+i}, v14, s[18:19] offset:{2*i}")
        A(f"global_load_ushort v{23+6*e+i}, v15, s[18:19] offset:{2*i}")
for e in range(2):
    A(f"v_mul_u32_u24 v{32+e}, 0xcccd, v{6+e}"); A(f"v_lshrrev_b32 v{32+e}, 21, v{32+e}")
    A(f"v_mul_u32_u24 v{34+e}, 40, v{32+e}"); A(f"v_sub_u32 v{34+e}, v{6+e}, v{34+e}")
    A(f"v_lshlrev_b32 v16, 2, v{32+e}"); A("v_mov_b32 v17, 1")
    A(f"ds_add_rtn_u32 v{36+e}, v16, v17")
A("s_waitcnt vmcnt(0)")
for e in range(2):
    b=40+8*e
    for i in range(3):
        A(f"v_lshlrev_b32 v{20+6*e+i}, 16, v{20+6*e+i}"); A(f"v_lshlrev_b32 v{23+6*e+i}, 16, v{23+6*e+i}")
        A(f"v_sub_f32 v{20+6*e+i}, v{20+6*e+i}, v{23+6*e+i}")
        bfr(20+6*e+i,20+6*e+i)
        A(f"v_mul_f32 v{23+6*e+i}, v{20+6*e+i}, v{20+6*e+i}"); bfr(23+6*e+i,23+6*e+i)
    A(f"v_add_f32 v{b+1}, v{23+6*e}, v{24+6*e}"); A(f"v_add_f32 v{b+1}, v{b+1}, v{25+6*e}"); bfr(b+1,b+1)
    A(f"v_lshl_or_b32 v{b}, v{34+e}, 16, v{8+e}")
    A(f"v_mov_b32 v{b+2}, v{10+2*e}"); A(f"v_mov_b32 v{b+3}, v{11+2*e}")
    A(f"v_lshrrev_b32 v{b+4}, 16, v{20+6*e}"); A(f"v_or_b32 v{b+4}, v{b+4}, v{21+6*e}")
    A(f"v_lshrrev_b32 v{b+5}, 16, v{22+6*e}")
lab("P_s1")
A("s_mov_b64 exec, s[6:7]")
A("s_waitcnt lgkmcnt(0)"); A("s_barrier")
A("ds_read_b32 v60, v2"); A("s_waitcnt lgkmcnt(0)"); A("v_mov_b32 v61, v60")
for sh in (1,2,4,8):
    A("s_nop 1"); A(f"v_add_u32_dpp v61, v61, v61 row_shr:{sh} row_mask:0xf bank_mask:0xf bound_ctrl:0")
A("s_nop 1"); A("v_add_u32_dpp v61, v61, v61 row_bcast:15 row_mask:0xa bank_mask:0xf")
A("s_nop 1"); A("v_add_u32_dpp v61, v61, v61 row_bcast:31 row_mask:0xc bank_mask:0xf")
A("s_nop 1"); A("v_readlane_b32 s8, v61, 63")
A("v_lshrrev_b32 v62, 6, v0"); A("v_lshlrev_b32 v63, 2, v62"); A("v_mov_b32 v64, s8")
A("ds_write_b32 v63, v64 offset:1024"); A("s_waitcnt lgkmcnt(0)"); A("s_barrier")
A("ds_read_b128 v[64:67], v3 offset:1024"); A("s_waitcnt lgkmcnt(0)")
A("v_sub_u32 v61, v61, v60")
for k in range(3):
    A(f"v_cmp_lt_u32 vcc, {k}, v62"); A("s_nop 1"); A(f"v_cndmask_b32 v68, 0, v{64+k}, vcc"); A("v_add_u32 v61, v61, v68")
A("s_barrier")
A("ds_write_b32 v2, v61")
A("s_lshl_b32 s3, s2, 2"); A("v_mul_u32_u24 v69, 1280, v0"); A("v_add_u32 v69, s3, v69"); A(f"v_add_u32 v69, {WS_OFF}, v69")
A("global_store_dword v69, v61, s[32:33]")
A("s_waitcnt lgkmcnt(0)"); A("s_barrier")
A("s_mov_b32 s4, 160000"); A("v_cmp_gt_u32 vcc, s4, v1"); A("s_and_saveexec_b64 s[6:7], vcc")
A("s_cbranch_execz K1_end")
for e in range(2):
    A(f"v_lshlrev_b32 v16, 2, v{32+e}"); A(f"ds_read_b32 v{70+e}, v16")
A("s_waitcnt lgkmcnt(0)"); A("s_mul_i32 s3, s2, 517")
for e in range(2):
    b=40+8*e
    A(f"v_add3_u32 v{70+e}, v{70+e}, v{36+e}, s3"); A(f"v_lshlrev_b32 v{70+e}, 5, v{70+e}"); A(f"v_add_u32 v{70+e}, {WS_LIST}, v{70+e}")
    A(f"global_store_dwordx4 v{70+e}, v[{b}:{b+3}], s[32:33]"); A(f"global_store_dwordx2 v{70+e}, v[{b+4}:{b+5}], s[32:33] offset:16")
A("s_branch K1_end")
lab("K1_G")
A("s_cmp_ge_u32 s2, 470"); A("s_cbranch_scc1 K1_T")
A("s_sub_u32 s3, s2, 313"); A("s_lshl_b32 s3, s3, 6")
A("v_and_b32 v1, 31, v0"); A("v_bfe_u32 v2, v0, 5, 1"); A("v_lshrrev_b32 v3, 6, v0")
A("v_lshl_add_u32 v4, v3, 5, v1")
A("v_lshlrev_b32 v5, 3, v2")
A("v_add_u32 v6, 128, v5"); A("v_lshlrev_b32 v6, 8, v6"); A("v_lshl_add_u32 v6, v4, 1, v6")
for s in range(8):
    for i in range(8):
        r=16+4*s+i//2
        A(f"global_load_ushort v{48+8*s+i}, v6, s[26:27] offset:{i*256}")
    A("v_add_u32 v6, 4096, v6")
A("s_waitcnt vmcnt(0)")
for q in range(32): A(f"v_lshl_or_b32 v{16+q}, v{49+2*q}, 16, v{48+2*q}")
for t in range(2):
    A(f"v_add_u32 v{8+t}, s3, v1");
    if t: A(f"v_add_u32 v{8+t}, 32, v{8+t}")
    A(f"v_min_u32 v10, 9999, v{8+t}"); A("v_lshlrev_b32 v10, 8, v10"); A("v_lshl_add_u32 v10, v5, 1, v10")
    for s in range(8):
        A(f"global_load_dwordx4 v[{48+32*t+4*s}:{51+32*t+4*s}], v10, s[16:17] offset:{32*s}")
A("s_waitcnt vmcnt(0)")
for t in range(2):
    for s in range(8):
        c = "0" if s==0 else f"v[{112+16*t}:{127+16*t}]"
        A(f"v_mfma_f32_32x32x16_bf16 v[{112+16*t}:{127+16*t}], v[{16+4*s}:{19+4*s}], v[{48+32*t+4*s}:{51+32*t+4*s}], {c}")
A("s_nop 15")
A("v_lshl_add_u32 v11, v3, 5, 0"); A("v_lshl_add_u32 v11, v2, 2, v11"); A("v_lshlrev_b32 v11, 1, v11")
for t in range(2):
    A(f"v_lshl_add_u32 v12, v{8+t}, 8, v11")
    A("s_movk_i32 s4, 10000"); A(f"v_cmp_gt_u32 vcc, s4, v{8+t}"); A("s_and_saveexec_b64 s[6:7], vcc")
    for j in range(4):
        d=112+16*t+4*j
        A(f"v_cvt_pk_bf16_f32 v{d}, v{d}, v{d+1}"); A(f"v_cvt_pk_bf16_f32 v{d+1}, v{d+2}, v{d+3}")
        A(f"global_store_dwordx2 v12, v[{d}:{d+1}], s[32:33] offset:{16*j}")
    A("s_mov_b64 exec, s[6:7]")
A("s_branch K1_end")
lab("K1_T")
A("s_cmp_ge_u32 s2, 494"); A("s_cbranch_scc1 K1_end")
A("s_sub_u32 s3, s2, 470"); A("s_lshl_b32 s3, s3, 8"); A("v_add_u32 v1, s3, v0")
A("s_mov_b64 s[8:9], s[26:27]"); A("s_movk_i32 s10, 8"); A(f"s_mov_b32 s11, {WS_W1}")
A("s_cmp_lt_u32 s2, 478"); A("s_cbranch_scc1 T_go")
A("v_subrev_u32 v1, 2048, v1"); A("s_mov_b64 s[8:9], s[30:31]"); A("s_movk_i32 s10, 9"); A(f"s_mov_b32 s11, {WS_WH}")
lab("T_go")
A("v_and_b32 v2, 127, v1"); A("v_lshrrev_b32 v3, 7, v1")
A("v_lshlrev_b32 v4, 11, v3"); A("v_lshl_add_u32 v4, v2, 1, v4")
for i in range(8):
    A(f"global_load_ushort v{16+i}, v4, s[8:9] offset:{i*256}")
A("v_lshlrev_b32 v5, s10, v2"); A("v_lshl_add_u32 v5, v3, 4, v5"); A("v_add_u32 v5, s11, v5")
A("s_waitcnt vmcnt(0)")
for q in range(4): A(f"v_lshl_or_b32 v{8+q}, v{17+2*q}, 16, v{16+2*q}")
A("global_store_dwordx4 v5, v[8:11], s[32:33]")
lab("K1_end"); A("s_endpgm")
AT=0; MO=24576; PO=45056; CN=45824; HOFF=45840; POFF=46096; LI=46400
khead("k2_kernel")
A("s_cmp_ge_u32 s2, 250"); A("s_cbranch_scc1 K2_end")
ptrs()
A("s_mul_i32 s36, s2, 40"); A("s_mov_b32 s60, 0")
A("v_lshrrev_b32 v1, 6, v0"); A("s_nop 0"); A("v_readfirstlane_b32 s37, v1")
A("v_and_b32 v2, 63, v0"); A("v_and_b32 v3, 15, v0"); A("v_bfe_u32 v4, v0, 4, 2")
A("v_mov_b32 v5, 0"); A("v_lshlrev_b32 v6, 2, v0")
for k in range(6):
    if k==5:
        A("v_cmp_gt_u32 vcc, 336, v0"); A("s_and_saveexec_b64 s[6:7], vcc")
    A(f"ds_write_b32 v6, v5 offset:{MO+4096*k}")
A("s_mov_b64 exec, s[6:7]")
A("v_lshlrev_b32 v7, 4, v3")
A("v_lshlrev_b32 v8, 2, v0"); A("s_mul_i32 s3, s2, 1280"); A(f"s_add_u32 s3, s3, {WS_OFF}"); A("v_add_u32 v8, s3, v8")
A(f"v_cmp_gt_u32 vcc, {NCH}, v0"); A("s_and_saveexec_b64 s[40:41], vcc"); A("s_mov_b64 s[42:43], exec")
A("global_load_dword v10, v8, s[32:33]"); A("global_load_dword v11, v8, s[32:33] offset:1280")
A("s_mov_b64 exec, s[40:41]")
A("s_waitcnt vmcnt(0)")
A("v_mul_u32_u24 v6, 517, v0"); A("v_mov_b32 v1, v10"); A("v_mov_b32 v5, v11")
lab("PASS")
HN=CN+16; PRE=CN+16+256*0+0
A("s_waitcnt lgkmcnt(0)"); A("s_barrier")
A("s_cmp_lt_u32 s37, 8"); A("s_cbranch_scc1 G1_skip"); A("s_cmp_lg_u32 s60, 0"); A("s_cbranch_scc1 G1_skip")
A("s_sub_u32 s3, s37, 8"); A("s_lshl_b32 s3, s3, 4")
A("v_add_u32 v12, s3, v3"); A("v_lshlrev_b32 v12, 8, v12"); A("v_lshl_add_u32 v12, v4, 4, v12"); A(f"v_add_u32 v12, {WS_W1}, v12")
for s_ in range(4): A(f"global_load_dwordx4 v[{16+4*s_}:{19+4*s_}], v12, s[32:33] offset:{64*s_}")
for t in range(3):
    A(f"v_add3_u32 v13, s36, v3, {16*t}"); A("v_min_u32 v13, 9999, v13"); A("v_lshlrev_b32 v13, 8, v13"); A("v_lshl_add_u32 v13, v4, 4, v13")
    for s_ in range(4): A(f"global_load_dwordx4 v[{32+16*t+4*s_}:{35+16*t+4*s_}], v13, s[16:17] offset:{64*s_}")
A("s_waitcnt vmcnt(0)")
for t in range(3):
    for s_ in range(4):
        A(f"v_mfma_f32_16x16x32_bf16 v[{80+4*t}:{83+4*t}], v[{16+4*s_}:{19+4*s_}], v[{32+16*t+4*s_}:{35+16*t+4*s_}], {'0' if s_==0 else f'v[{80+4*t}:{83+4*t}]'}")
A("s_lshl_b32 s4, s3, 2"); A("s_nop 7")
for t in range(3):
    A(f"v_add_u32 v14, {16*t}, v3"); A("v_lshlrev_b32 v14, 9, v14"); A("v_lshl_add_u32 v14, v4, 4, v14"); A("v_add_u32 v14, s4, v14")
    A(f"ds_write_b128 v14, v[{80+4*t}:{83+4*t}]")
lab("G1_skip")
A("s_cmp_ge_u32 s37, 5"); A("s_cbranch_scc1 F_skip")
A("s_mov_b64 exec, s[42:43]")
A("v_sub_u32 v20, v5, v1"); A("v_min_u32 v20, 10, v20")
A("v_add_u32 v21, v6, v1"); A("v_lshlrev_b32 v21, 5, v21"); A(f"v_add_u32 v21, {WS_LIST}, v21")
for j in range(RR):
    A(f"v_cmp_lt_u32 vcc, {j}, v20"); A("s_and_b64 exec, s[42:43], vcc")
    A(f"global_load_dwordx4 v[{32+6*j}:{35+6*j}], v21, s[32:33] offset:{32*j}")
    A(f"global_load_dwordx2 v[{36+6*j}:{37+6*j}], v21, s[32:33] offset:{32*j+16}")
A("s_mov_b64 exec, s[42:43]")
A("v_add_u32 v1, v1, v20")
A("v_cmp_lt_u32 vcc, v1, v5"); A("s_and_b64 exec, s[42:43], vcc"); A("v_mov_b32 v22, 1"); A(f"v_mov_b32 v23, {CN}"); A("ds_write_b32 v23, v22 offset:4")
A("s_mov_b64 exec, s[42:43]"); A("v_mov_b32 v22, 1")
A("s_waitcnt vmcnt(0)")
for j in range(RR):
    A(f"v_cmp_lt_u32 vcc, {j}, v20"); A("s_and_b64 exec, s[42:43], vcc")
    A(f"v_lshrrev_b32 v23, 16, v{32+6*j}"); A("v_lshlrev_b32 v23, 2, v23"); A(f"ds_add_rtn_u32 v{8+j}, v23, v22 offset:{HOFF}")
A("s_mov_b64 exec, -1")
lab("F_skip")
A("s_waitcnt lgkmcnt(0)"); A("s_barrier")
A("s_cmp_lg_u32 s37, 0"); A("s_cbranch_scc1 F2")
A("v_lshlrev_b32 v23, 2, v2"); A(f"ds_read_b32 v24, v23 offset:{HOFF}"); A("s_waitcnt lgkmcnt(0)"); A("v_mov_b32 v25, v24")
for sh in (1,2,4,8):
    A("s_nop 1"); A(f"v_add_u32_dpp v25, v25, v25 row_shr:{sh} row_mask:0xf bank_mask:0xf bound_ctrl:0")
A("s_nop 1"); A("v_add_u32_dpp v25, v25, v25 row_bcast:15 row_mask:0xa bank_mask:0xf")
A("s_nop 1"); A("v_add_u32_dpp v25, v25, v25 row_bcast:31 row_mask:0xc bank_mask:0xf")
A("v_sub_u32 v25, v25, v24"); A(f"ds_write_b32 v23, v25 offset:{POFF}")
A("v_mov_b32 v24, 0"); A(f"ds_write_b32 v23, v24 offset:{HOFF}")
lab("F2")
A("s_waitcnt lgkmcnt(0)"); A("s_barrier")
A("s_cmp_ge_u32 s37, 5"); A("s_cbranch_scc1 F3")
for j in range(RR):
    A(f"v_cmp_lt_u32 vcc, {j}, v20"); A("s_and_b64 exec, s[42:43], vcc")
    A(f"v_lshrrev_b32 v23, 16, v{32+6*j}"); A("v_lshlrev_b32 v23, 2, v23"); A(f"ds_read_b32 v24, v23 offset:{POFF}"); A("s_waitcnt lgkmcnt(0)")
    A(f"v_add_u32 v24, v24, v{8+j}"); A("v_mul_u32_u24 v24, 24, v24")
    for q in range(3): A(f"ds_write_b64 v24, v[{32+6*j+2*q}:{33+6*j+2*q}] offset:{LI+8*q}")
A("s_mov_b64 exec, -1")
lab("F3")
A("v_add_u32 v9, 65536, v7")
for j in range(5): A(f"global_load_dwordx4 v[{32+4*j}:{35+4*j}], v9, s[26:27] offset:{j*256}")
A("global_load_dwordx4 v[52:55], v7, s[28:29]")
A("s_waitcnt vmcnt(0)")
for j in range(5):
    for q in range(4):
        A(f"v_lshlrev_b32 v{64+8*j+2*q}, 16, v{32+4*j+q}"); A(f"v_and_b32 v{65+8*j+2*q}, 0xffff0000, v{32+4*j+q}")
for q in range(4):
    A(f"v_lshlrev_b32 v{104+2*q}, 16, v{52+q}"); A(f"v_and_b32 v{105+2*q}, 0xffff0000, v{52+q}")
A("s_waitcnt lgkmcnt(0)"); A("s_barrier")
A(f"v_mov_b32 v14, {CN}"); A("ds_read_b64 v[16:17], v14"); A("s_waitcnt lgkmcnt(0)")
A("s_nop 0"); A("v_readfirstlane_b32 s39, v17")
A("s_mov_b32 s44, 0xbfb8aa3b"); A("s_mov_b32 s45, 0xbfb8aa3b")
lab("NLOOP")
A("s_mov_b64 exec, 1"); A(f"v_mov_b32 v14, {CN}"); A("v_mov_b32 v15, 1"); A("ds_add_rtn_u32 v15, v14, v15"); A("s_waitcnt lgkmcnt(0)")
A("v_readfirstlane_b32 s48, v15"); A("s_mov_b64 exec, -1")
A("s_cmp_ge_u32 s48, 40"); A("s_cbranch_scc1 E_done")
A("s_lshl_b32 s3, s48, 2"); A("v_mov_b32 v14, s3"); A(f"ds_read_b64 v[16:17], v14 offset:{POFF}")
A("s_lshl_b32 s3, s48, 9"); A("v_lshl_add_u32 v15, v7, 1, s3")
A("ds_read_b128 v[8:11], v15"); A("ds_read_b128 v[12:15], v15 offset:16")
for r in list(range(112,122))+[56]: A(f"v_mov_b32 v{r}, 0")
A("s_waitcnt lgkmcnt(0)")
A("v_readfirstlane_b32 s51, v16"); A("v_readfirstlane_b32 s50, v17")
A("s_cmp_ge_u32 s51, s50"); A("s_cbranch_scc1 N_end")
A("s_sub_u32 s46, s50, 1")
lab("ILOOP")
for u in range(U):
    A(f"v_add_u32 v{16+u}, s51, v4"); A(f"v_add_u32 v{16+u}, {4*u}, v{16+u}")
    A(f"v_cmp_gt_u32 s[{52+2*u}:{53+2*u}], s50, v{16+u}")
    A(f"v_min_u32 v{16+u}, s46, v{16+u}"); A(f"v_mul_u32_u24 v{16+u}, 24, v{16+u}"); A(f"ds_read_b32 v{24+u}, v{16+u} offset:{LI}")
A("s_waitcnt lgkmcnt(0)")
for u in range(U):
    A(f"v_and_b32 v{24+u}, 0xffff, v{24+u}"); A(f"v_lshl_add_u32 v{24+u}, v{24+u}, 8, v7")
    A(f"global_load_dwordx4 v[{32+4*u}:{35+4*u}], v{24+u}, s[32:33]")
for u in range(U):
    Bq=32+4*u
    if u: A(f"s_add_u32 s3, s51, {4*u}"); A("s_cmp_ge_u32 s3, s50"); A("s_cbranch_scc1 N_end")
    A(f"ds_read_b32 v57, v{16+u} offset:{LI+4}"); A(f"ds_read_b64 v[58:59], v{16+u} offset:{LI+8}"); A(f"ds_read_b64 v[60:61], v{16+u} offset:{LI+16}")
    A(f"s_waitcnt vmcnt({U-1-u})")
    for q in range(4):
        A(f"v_lshlrev_b32 v{24+2*q}, 16, v{Bq+q}"); A(f"v_and_b32 v{25+2*q}, 0xffff0000, v{Bq+q}")
    for q in range(4): A(f"v_pk_add_f32 v[{24+2*q}:{25+2*q}], v[{24+2*q}:{25+2*q}], v[{8+2*q}:{9+2*q}]")
    A("s_waitcnt lgkmcnt(0)")
    A("v_lshlrev_b32 v122, 16, v58"); A("v_and_b32 v123, 0xffff0000, v58"); A("v_lshlrev_b32 v124, 16, v59"); A("v_and_b32 v125, 0xffff0000, v59")
    xs=[57,122,123,124,125]
    for j in range(5):
        x=xs[j]
        for q in range(4):
            if x%2==0: src=f"v[{x}:{x+1}]"; os_="op_sel_hi:[0,1,1]"
            else: src=f"v[{x-1}:{x}]"; os_="op_sel:[1,0,0] op_sel_hi:[1,1,1]"
            A(f"v_pk_fma_f32 v[{24+2*q}:{25+2*q}], {src}, v[{64+8*j+2*q}:{65+8*j+2*q}], v[{24+2*q}:{25+2*q}] {os_}")
    T=Bq
    tr=[Bq,Bq+1,Bq+2,Bq+3,62,63,126,127]
    for q in range(4): A(f"v_pk_mul_f32 v[{tr[2*q]}:{tr[2*q+1]}], v[{24+2*q}:{25+2*q}], s[44:45]")
    for q in range(8): A(f"v_exp_f32 v{tr[q]}, v{tr[q]}")
    A("s_nop 0")
    for q in range(4): A(f"v_pk_add_f32 v[{tr[2*q]}:{tr[2*q+1]}], v[{tr[2*q]}:{tr[2*q+1]}], 1.0 op_sel_hi:[1,0]")
    for q in range(8): A(f"v_rcp_f32 v{tr[q]}, v{tr[q]}")
    A("s_nop 0")
    for q in range(4): A(f"v_pk_mul_f32 v[{24+2*q}:{25+2*q}], v[{24+2*q}:{25+2*q}], v[{tr[2*q]}:{tr[2*q+1]}]")
    A("v_pk_mul_f32 v[62:63], v[24:25], v[104:105]")
    for q in range(1,4): A(f"v_pk_fma_f32 v[62:63], v[{24+2*q}:{25+2*q}], v[{104+2*q}:{105+2*q}], v[62:63]")
    A("v_add_f32 v62, v62, v63")
    A("v_lshlrev_b32 v63, 16, v60"); A("v_and_b32 v126, 0xffff0000, v60"); A("v_lshlrev_b32 v127, 16, v61")
    A(f"s_mov_b64 exec, s[{52+2*u}:{53+2*u}]")
    for q in range(4): A(f"v_pk_add_f32 v[{112+2*q}:{113+2*q}], v[{112+2*q}:{113+2*q}], v[{24+2*q}:{25+2*q}]")
    A("v_fmac_f32 v120, v62, v63"); A("v_fmac_f32 v121, v62, v126"); A("v_fmac_f32 v56, v62, v127")
    A("s_mov_b64 exec, -1")
A(f"s_add_u32 s51, s51, {4*U}"); A("s_cmp_lt_u32 s51, s50"); A("s_cbranch_scc1 ILOOP")
lab("N_end")
A("s_waitcnt vmcnt(0)")
for r in (8,4,2,1):
    A("s_nop 1")
    for x in (120,121,56): A(f"v_add_f32_dpp v{x}, v{x}, v{x} row_ror:{r} row_mask:0xf bank_mask:0xf")
A("v_cmp_eq_u32 vcc, 1, v3"); A("s_nop 1"); A("v_cndmask_b32 v120, v120, v121, vcc")
A("v_cmp_eq_u32 vcc, 2, v3"); A("s_nop 1"); A("v_cndmask_b32 v120, v120, v56, vcc")
for x in (16,32):
    A(f"v_xor_b32 v16, {x}, v2"); A("v_lshlrev_b32 v16, 2, v16")
    for r in range(9): A(f"ds_bpermute_b32 v{24+r}, v16, v{112+r}")
    A("s_waitcnt lgkmcnt(0)")
    for r in range(9): A(f"v_add_f32 v{112+r}, v{112+r}, v{24+r}")
A("v_cmp_gt_u32 vcc, 16, v2"); A("s_and_b64 exec, exec, vcc")
A("s_mul_i32 s3, s48, 512"); A("v_lshl_add_u32 v15, v7, 1, s3")
A(f"ds_read_b128 v[24:27], v15 offset:{MO}"); A(f"ds_read_b128 v[28:31], v15 offset:{MO+16}")
A("s_lshl_b32 s3, s48, 4"); A("v_lshl_add_u32 v16, v3, 2, s3"); A(f"ds_read_b32 v17, v16 offset:{PO}")
A("s_waitcnt lgkmcnt(0)")
for q in range(4): A(f"v_pk_add_f32 v[{112+2*q}:{113+2*q}], v[{112+2*q}:{113+2*q}], v[{24+2*q}:{25+2*q}]")
A("v_add_f32 v120, v120, v17")
A(f"ds_write_b128 v15, v[112:115] offset:{MO}"); A(f"ds_write_b128 v15, v[116:119] offset:{MO+16}")
A("v_cmp_gt_u32 vcc, 3, v3"); A("s_and_b64 exec, exec, vcc"); A(f"ds_write_b32 v16, v120 offset:{PO}")
A("s_mov_b64 exec, -1")
A("s_branch NLOOP")
lab("E_done")
A("s_waitcnt lgkmcnt(0)"); A("s_barrier")
A("s_cmp_eq_u32 s39, 0"); A("s_cbranch_scc1 NODE")
A("v_mov_b32 v16, 0"); A("v_mov_b32 v17, 0"); A(f"v_mov_b32 v14, {CN}"); A("ds_write_b64 v14, v[16:17]"); A("s_mov_b32 s60, 1"); A("s_branch PASS")
lab("NODE")
A("s_and_b32 s3, s37, 7"); A("s_lshl_b32 s3, s3, 4")
A("v_add_u32 v12, s3, v3"); A("v_lshlrev_b32 v12, 9, v12"); A("v_lshl_add_u32 v12, v4, 4, v12"); A(f"v_add_u32 v12, {WS_WH}, v12")
for s_ in range(8): A(f"global_load_dwordx4 v[{64+4*s_}:{67+4*s_}], v12, s[32:33] offset:{64*s_}")
A("s_mov_b32 s61, 0"); A("s_cmp_lt_u32 s37, 8"); A("s_cbranch_scc1 NT"); A("s_mov_b32 s61, 32")
lab("NT")
A("v_add_u32 v13, s61, v3"); A("v_add_u32 v13, s36, v13"); A("v_min_u32 v15, 9999, v13"); A("v_lshlrev_b32 v15, 8, v15"); A("v_lshl_add_u32 v14, v4, 4, v15")
for s_ in range(4): A(f"global_load_dwordx4 v[{16+4*s_}:{19+4*s_}], v14, s[16:17] offset:{64*s_}")
A("s_lshl_b32 s4, s3, 1"); A("v_lshl_add_u32 v15, v4, 3, v15"); A("v_add_u32 v15, s4, v15")
A("global_load_dwordx2 v[56:57], v15, s[16:17]")
A("v_add_u32 v14, s61, v3"); A("v_min_u32 v14, 39, v14"); A("v_lshlrev_b32 v14, 9, v14"); A("v_lshl_add_u32 v14, v4, 5, v14")
for s_ in range(4):
    A(f"ds_read_b128 v[{96+8*s_}:{99+8*s_}], v14 offset:{MO+128*s_}"); A(f"ds_read_b128 v[{100+8*s_}:{103+8*s_}], v14 offset:{MO+128*s_+16}")
A("s_waitcnt lgkmcnt(0)")
for s_ in range(4):
    for q in range(4): A(f"v_cvt_pk_bf16_f32 v{32+4*s_+q}, v{96+8*s_+2*q}, v{97+8*s_+2*q}")
A("s_waitcnt vmcnt(0)"); A("s_nop 1")
for s_ in range(8):
    A(f"v_mfma_f32_16x16x32_bf16 v[48:51], v[{64+4*s_}:{67+4*s_}], v[{16+4*s_}:{19+4*s_}], {'0' if s_==0 else 'v[48:51]'}")
A("s_nop 7")
for r in range(4):
    bfr(48+r,48+r)
    A(f"v_mul_f32 v{52+r}, s44, v{48+r}"); A(f"v_exp_f32 v{52+r}, v{52+r}"); A("s_nop 0"); A(f"v_add_f32 v{52+r}, 1.0, v{52+r}")
    A(f"v_rcp_f32 v{52+r}, v{52+r}"); A("s_nop 0"); A(f"v_mul_f32 v{48+r}, v{48+r}, v{52+r}"); bfr(48+r,48+r)
A("v_lshlrev_b32 v52, 16, v56"); A("v_and_b32 v53, 0xffff0000, v56"); A("v_lshlrev_b32 v54, 16, v57"); A("v_and_b32 v55, 0xffff0000, v57")
for r in range(4): A(f"v_add_f32 v{48+r}, v{48+r}, v{52+r}")
A("v_cvt_pk_bf16_f32 v48, v48, v49"); A("v_cvt_pk_bf16_f32 v49, v50, v51")
A("v_add_u32 v14, s61, v3"); A("v_cmp_gt_u32 vcc, 40, v14"); A("s_and_saveexec_b64 s[6:7], vcc")
A("global_store_dwordx2 v15, v[48:49], s[34:35]")
A("s_mov_b64 exec, s[6:7]")
A("s_cmp_lg_u32 s61, 0"); A("s_cbranch_scc1 POSO"); A("s_mov_b32 s61, 16"); A("s_branch NT")
lab("POSO")
A("s_cmp_lt_u32 s37, 8"); A("s_cbranch_scc1 K2_end")
A("s_cmp_ge_u32 s37, 10"); A("s_cbranch_scc1 K2_end")
A("v_subrev_u32 v12, 512, v0")
A("v_cmp_gt_u32 vcc, 120, v12"); A("s_and_saveexec_b64 s[6:7], vcc"); A("s_cbranch_execz K2_end")
A("v_mul_u32_u24 v13, 0x5556, v12"); A("v_lshrrev_b32 v13, 16, v13"); A("v_add_u32 v14, v12, v13"); A("v_lshlrev_b32 v14, 2, v14")
A(f"ds_read_b32 v15, v14 offset:{PO}")
A("s_mul_i32 s3, s36, 3"); A("v_add_u32 v12, s3, v12"); A("v_lshlrev_b32 v12, 1, v12")
A("global_load_ushort v16, v12, s[18:19]"); A("s_waitcnt vmcnt(0) lgkmcnt(0)")
bfr(15,15); A("v_lshlrev_b32 v16, 16, v16"); A("v_add_f32 v16, v16, v15"); A("v_cvt_pk_bf16_f32 v16, v16, v16")
A("v_add_u32 v12, 2560000, v12"); A("global_store_short v12, v16, s[34:35]")
lab("K2_end"); A("s_endpgm")
out+=L
out+=['.section .rodata,"a"']
for n,v in (("k1_kernel",144),("k2_kernel",128)):
    out+=['.p2align 6',f'.amdhsa_kernel {n}',f'  .amdhsa_next_free_vgpr {v}','  .amdhsa_next_free_sgpr 64',f'  .amdhsa_accum_offset {v}',
    '  .amdhsa_group_segment_fixed_size 0','  .amdhsa_kernarg_size 88','  .amdhsa_user_sgpr_count 2','  .amdhsa_user_sgpr_kernarg_segment_ptr 1',
    '  .amdhsa_system_sgpr_workgroup_id_x 1','  .amdhsa_float_denorm_mode_32 3','.end_amdhsa_kernel']
open('gather_scatter__cheap_equivariant_egnn__graph.s','w').write('\n'.join(out)+'\n')
```
